```python
import torch

def _softmax(x, axis=-1):
    return torch.softmax(x, dim=axis)
def _gelu(x):
    return torch.nn.functional.gelu(x, approximate="tanh")
def _silu(x):
    return torch.nn.functional.silu(x)
def _sigmoid(x):
    return torch.sigmoid(x)
def _layernorm(x, axis=-1, eps=1e-5):
    m = x.mean(dim=axis, keepdim=True)
    v = x.var(dim=axis, keepdim=True, unbiased=False)
    return (x - m) / torch.sqrt(v + eps)
def _scatter_add(tgt, idx, src, axis=0):
    return tgt.clone().index_add_(axis, idx, src)
def _segment_sum(src, seg, n):
    out = torch.zeros((n,) + src.shape[1:], dtype=src.dtype)
    return out.index_add_(0, seg, src)
def _pad(x, pw):
    flat = tuple(v for pair in reversed(pw) for v in pair)
    return torch.nn.functional.pad(x, flat)

kernel_name = 'parallel_sum__mha_block__glu_gated_geglu__prompt'

def setup_inputs():

    _w = (lambda a: (lambda t: t.to(torch.bfloat16) if t.is_floating_point() else t)(torch.as_tensor(a)))
    def _A_setup():
        B, S, D, H = 1, 2048, 512, 32
        return {
            "x": _w((lambda *s: torch.randn(*s, dtype=torch.bfloat16) * 0.05)(B, S, D)),
            "wqkv": _w((lambda *s: torch.randn(*s, dtype=torch.bfloat16) * 0.05)(D, 3 * D)),
            "wo": _w((lambda *s: torch.randn(*s, dtype=torch.bfloat16) * 0.05)(D, D)),
        }
    _A_in = _A_setup()

    def _B_setup():
        B, S, Dm, Df = 1, 2048, 512, 1792
        return {
            "x": _w((lambda *s: torch.randn(*s, dtype=torch.bfloat16) * 0.05)(B, S, Dm)),
            "w_gate": _w((lambda *s: torch.randn(*s, dtype=torch.bfloat16) * 0.4)(Dm, Df) * (Dm ** -0.5)),
            "w_up": _w((lambda *s: torch.randn(*s, dtype=torch.bfloat16) * 0.4)(Dm, Df) * (Dm ** -0.5)),
            "w_down": _w((lambda *s: torch.randn(*s, dtype=torch.bfloat16) * 0.4)(Df, Dm) * (Df ** -0.5)),
        }
    _B_in = _B_setup()

    return {
        "A_x": _A_in["x"],
        "A_wqkv": _A_in["wqkv"],
        "A_wo": _A_in["wo"],
        "B_x": _B_in["x"],
        "B_w_gate": _B_in["w_gate"],
        "B_w_up": _B_in["w_up"],
        "B_w_down": _B_in["w_down"],
    }

def reference(A_x, A_wqkv, A_wo, B_x, B_w_gate, B_w_up, B_w_down):
    def _A_ref(x, wqkv, wo):
        B, S, D = x.shape
        H = 32
        Dh = D // H
        qkv = (lambda x, *d: x.permute(*d))((x @ wqkv).reshape(B, S, 3, H, Dh), 2, 0, 3, 1, 4)
        q, k, v = qkv[0], qkv[1], qkv[2]
        scores = torch.einsum("bhqd,bhkd->bhqk", q, k) * (Dh ** -0.5)
        p = _softmax(scores, axis=-1)
        o = torch.einsum("bhqk,bhkd->bhqd", p, v)
        return (lambda x, *d: x.permute(*d))(o, 0, 2, 1, 3).reshape(B, S, D) @ wo

    def _B_ref(x, w_gate, w_up, w_down):
        g = torch.einsum("bsd,df->bsf", x, w_gate)
        u = torch.einsum("bsd,df->bsf", x, w_up)
        h = _gelu(g) * u
        return torch.einsum("bsf,fd->bsd", h, w_down)

    x = A_x
    xn = _layernorm(x, axis=-1)
    return x + _A_ref(xn, A_wqkv, A_wo) + _B_ref(xn, B_w_gate, B_w_up, B_w_down)
```

```python
import re

def regs_of(tok):
    tok = tok.strip()
    neg = tok.lstrip('-')
    if neg.startswith('|') : neg = neg.strip('|')
    m = re.fullmatch(r'abs\((.*)\)', neg)
    if m: neg = m.group(1)
    m = re.fullmatch(r'([vsa])\[(\d+):(\d+)\]', neg)
    if m:
        return {(m.group(1), i) for i in range(int(m.group(2)), int(m.group(3)) + 1)}
    m = re.fullmatch(r'([vsa])(\d+)', neg)
    if m:
        return {(m.group(1), int(m.group(2)))}
    if neg in ('vcc', 'vcc_lo', 'vcc_hi'): return {('x', 'vcc')}
    if neg in ('exec', 'exec_lo', 'exec_hi'): return {('x', 'exec')}
    if neg == 'm0': return {('x', 'm0')}
    if neg == 'scc': return {('x', 'scc')}
    return set()

TRANS = ('v_exp_f32', 'v_log_f32', 'v_rcp_f32', 'v_rsq_f32', 'v_sqrt_f32', 'v_sin_f32', 'v_cos_f32')

class Ins:
    def __init__(self, text):
        self.text = text
        t = text.split(';')[0].strip()
        self.is_label = t.endswith(':')
        self.is_dir = t.startswith('.')
        self.op = t.split()[0] if t else ''
        rest = t[len(self.op):].strip()
        ops = []
        cur = ''
        depth = 0
        for ch in rest:
            if ch == '[': depth += 1
            if ch == ']': depth -= 1
            if ch == ',' and depth == 0:
                ops.append(cur.strip()); cur = ''
            else:
                cur += ch
        if cur.strip(): ops.append(cur.strip())
        mods = []
        if ops:
            parts = ops[-1].split()
            ops[-1] = parts[0]
            mods = parts[1:]
        self.ops = ops
        self.mods = mods
        self.rd = set(); self.wr = set()
        self.kind = 'other'
        op = self.op
        R = regs_of
        if self.is_label or self.is_dir or not op:
            self.kind = 'none'
        elif op.startswith('v_mfma') or op.startswith('v_smfmac'):
            self.kind = 'mfma'
            self.wr = R(ops[0])
            self.srcA = R(ops[1]); self.srcB = R(ops[2])
            if op.startswith('v_smfmac'):
                self.srcC = R(ops[0]); self.srcA |= R(ops[3])
            else:
                self.srcC = R(ops[3])
            self.rd = self.srcA | self.srcB | self.srcC
            self.passes = 8 if '32x32' in op else (4 if '16x16' in op else 2)
        elif op.startswith('v_'):
            self.kind = 'valu'
            if op.startswith('v_cmp'):
                self.wr = R(ops[0]);
                for o in ops[1:]: self.rd |= R(o)
                if op.startswith('v_cmpx'): self.wr |= {('x', 'exec')}
            elif 'permlane' in op and 'swap' in op:
                self.wr = R(ops[0]) | R(ops[1]); self.rd = set(self.wr)
            elif op.startswith('v_readfirstlane') or op.startswith('v_readlane'):
                self.wr = R(ops[0]);
                for o in ops[1:]: self.rd |= R(o)
            elif op.startswith('v_add_co') or op.startswith('v_addc_co') or op.startswith('v_sub_co'):
                self.wr = R(ops[0]) | R(ops[1])
                for o in ops[2:]: self.rd |= R(o)
            elif op == 'v_nop':
                pass
            else:
                self.wr = R(ops[0])
                for o in ops[1:]: self.rd |= R(o)
                if op.startswith('v_fmac') or op.startswith('v_dot2c') or 'sdwa' in op or op.startswith('v_writelane') or any(m.startswith('row_') or m.startswith('quad_perm') or m.startswith('wave_') for m in mods):
                    self.rd |= self.wr
            self.dpp = any(m.startswith('row_') or m.startswith('quad_perm') or m.startswith('wave_') for m in mods)
            self.trans = op.replace('_e32','').replace('_e64','') in TRANS
        elif op.startswith('ds_'):
            self.kind = 'ds'
            if op.startswith('ds_read') or op.startswith('ds_bpermute') or op.startswith('ds_swizzle') or '_rtn' in op:
                self.wr = R(ops[0])
                for o in ops[1:]: self.rd |= R(o)
            else:
                for o in ops: self.rd |= R(o)
        elif op.startswith('buffer_') or op.startswith('global_'):
            self.kind = 'vmem'
            self.lds = ('lds' in mods) or ('_lds_' in op)
            if op.startswith('buffer_wbl2') or op.startswith('buffer_inv'):
                pass
            elif 'load' in op and not self.lds:
                self.wr = R(ops[0])
                for o in ops[1:]: self.rd |= R(o)
            elif 'atomic' in op and ('sc0' in mods):
                self.wr = R(ops[0])
                for o in ops: self.rd |= R(o)
            else:
                for o in ops: self.rd |= R(o)
                if self.lds: self.rd |= {('x', 'm0')}
            self.store_wide = ('store' in op) and ('x4' in op or 'x3' in op)
            if 'store' in op:
                self.data = R(ops[0]) if op.startswith('buffer_') else R(ops[1])
        elif op.startswith('s_'):
            self.kind = 'salu'
            if op.startswith('s_load') or op.startswith('s_memtime') or op.startswith('s_memrealtime') or op.startswith('s_buffer_load'):
                self.kind = 'smem'
                self.wr = R(ops[0])
                for o in ops[1:]: self.rd |= R(o)
            elif op in ('s_waitcnt', 's_nop', 's_barrier', 's_endpgm', 's_branch', 's_setprio', 's_sleep') or op.startswith('s_cbranch'):
                pass
            elif op.startswith('s_cmp'):
                for o in ops: self.rd |= R(o)
            else:
                self.wr = R(ops[0])
                for o in ops[1:]: self.rd |= R(o)
                if 'saveexec' in op: self.wr |= {('x', 'exec')}

    def states(self):
        if self.kind == 'none': return 0
        if self.op == 's_nop': return int(self.ops[0], 0) + 1
        return 1

def need_states(p, c):
    n = 0
    vt = lambda s: {r for r in s if r[0] in 'va'}
    if p.kind == 'valu':
        pw = p.wr
        pv = vt(pw); ps = {r for r in pw if r[0] == 's' or r == ('x', 'vcc')}
        if c.kind == 'mfma' and (pv & c.rd): n = max(n, 2)
        if c.kind == 'mfma' and ('x', 'exec') in pw: n = max(n, 4)
        if c.kind == 'valu':
            if getattr(p, 'trans', False) and (pv & c.rd) and not c.trans: n = max(n, 1)
            if 'permlane' in c.op and (pv & c.rd): n = max(n, 2)
            if (c.op.startswith('v_readfirstlane') or c.op.startswith('v_readlane')) and (pv & c.rd): n = max(n, 1)
            if c.dpp and (pv & c.rd): n = max(n, 2)
            if ps & c.rd: n = max(n, 2)
            if (c.op.startswith('v_cndmask') and len(c.ops) >= 4 and c.ops[3] == 'vcc' and ('x', 'vcc') in pw): n = max(n, 2)
            if ('x', 'exec') in pw and c.dpp: n = max(n, 5)
            if ('x', 'exec') in pw and ('permlane' in c.op or 'readlane' in c.op or 'readfirstlane' in c.op): n = max(n, 4)
            if 'sdwa' in p.op and (pv & (c.rd | c.wr)): n = max(n, 1)
        if c.kind == 'vmem' and (ps & c.rd): n = max(n, 5)
        if c.kind in ('salu', 'smem') and (ps & c.rd): n = max(n, 1)
    if p.kind == 'mfma':
        D = p.wr
        k = {2: 0, 4: 1, 8: 2}[p.passes]
        if c.kind == 'mfma':
            if D & (c.srcA | c.srcB): n = max(n, (5, 8, 12)[k])
            if D & c.srcC:
                if D == c.srcC and c.passes == p.passes: n = max(n, (2, 0, 0)[k])
                else: n = max(n, (4, 6, 10)[k])
            if (D & c.wr) and not (D & c.srcC): n = max(n, (4, 6, 10)[k])
        elif c.kind in ('valu', 'vmem', 'ds'):
            if D & (c.rd | c.wr): n = max(n, (5, 8, 12)[k])
            if c.kind == 'valu' and (p.srcC & c.wr): n = max(n, (1, 3, 7)[k])
            if c.kind in ('vmem', 'ds') and (p.srcC & c.wr): n = max(n, (1, 3, 7)[k])
    if p.kind == 'salu' and ('x', 'm0') in p.wr and c.kind == 'vmem' and c.lds: n = max(n, 1)
    if p.kind == 'vmem' and getattr(p, 'store_wide', False) and (p.data & c.wr): n = max(n, 2)
    return n

class Prog:
    def __init__(self):
        self.ins = []
    def __call__(self, text):
        for line in text.split('\n'):
            if line.strip(): self.ins.append(Ins(line.strip()))
    def extend(self, lst):
        for x in lst: self(x)
    def finalize(self, check_wait=True):
        out = []
        for c in self.ins:
            if c.kind == 'none':
                out.append(c); continue
            dist = 0; need = 0
            for p in reversed(out):
                if dist >= 20: break
                if p.kind == 'none': continue
                r = need_states(p, c) - dist
                if r > need: need = r
                dist += p.states()
            while need > 0:
                k = min(need, 16)
                out.append(Ins(f's_nop {k-1}')); need -= k
            out.append(c)
        self.ins = out
        if check_wait: self.check_waits()
    def check_waits(self):
        vm = []
        lg = []
        errs = []
        for idx, c in enumerate(self.ins):
            if c.kind == 'none': continue
            if c.op == 's_waitcnt':
                t = c.text
                m = re.search(r'vmcnt\((\d+)\)', t)
                if m:
                    n = int(m.group(1)); vm = vm[len(vm) - n:] if n < len(vm) else vm
                    if n == 0: vm = []
                m = re.search(r'lgkmcnt\((\d+)\)', t)
                if m:
                    n = int(m.group(1))
                    if any(k == 'smem' for k, _ in lg) and n != 0: errs.append((idx, c.text, 'counted lgkm with smem outstanding'))
                    lg = lg[len(lg) - n:] if n < len(lg) else lg
                    if n == 0: lg = []
                continue
            touched = c.rd | c.wr
            for w in vm:
                if w & touched: errs.append((idx, c.text, 'touches outstanding vmem dest'))
            for k, w in lg:
                if w & touched and not (c.kind == 'ds' and k == 'ds' and not (w & c.rd)): errs.append((idx, c.text, 'touches outstanding lgkm dest'))
            if c.kind == 'vmem':
                vm.append(set(c.wr))
                if len(vm) > 63: errs.append((idx, c.text, 'vmcnt overflow'))
            if c.kind == 'ds':
                lg.append(('ds', set(c.wr)))
                if len(lg) > 15: errs.append((idx, c.text, 'WARN lgkmcnt overflow (>15 outstanding)'))
            if c.kind == 'smem': lg.append(('smem', set(c.wr)))
        hard = [e for e in errs if not e[2].startswith('WARN')]
        if hard:
            for e in hard[:20]: print('WAITCHECK', e)
            raise RuntimeError('waitcnt check failed')
    def text(self):
        return '\n'.join((i.text if (i.is_label or i.is_dir) else '    ' + i.text) for i in self.ins) + '\n'
    def maxreg(self, cls):
        m = -1
        for i in self.ins:
            for r in (i.rd | i.wr):
                if r[0] == cls: m = max(m, r[1])
        return m
```

```python
from asmlib import Prog
import math, struct
def f2u(x): return struct.unpack('<I', struct.pack('<f', x))[0]
def hexf(x): return hex(f2u(x))
QOFF  = 0
KVOFF = 2 << 20
ACT   = 6 << 20
PART  = 16 << 20
WS_USED = 24 << 20
LOG2E = 1.4426950408889634
QSCALE = 0.25 * LOG2E
KARG = dict(x=0, wqkv=8, wo=16, bx=24, gate=32, up=40, down=48, out=56, dbg=64, ws=72)
SIZES = dict(x=2048*512*2, wqkv=512*1536*2, wo=512*512*2, gate=512*1792*2, up=512*1792*2, down=1792*512*2, out=2048*512*2, ws=WS_USED)

class VM:
    def __init__(self): self.q = []
    def issue(self, tag): self.q.append(tag)
    def count_after(self, tags):
        if isinstance(tags, str): tags = [tags]
        last = -1
        for i, t in enumerate(self.q):
            if t in tags: last = i
        return len(self.q) - 1 - last
    def wait(self, p, tags, extra=''):
        n = self.count_after(tags)
        assert n <= 63
        p(f's_waitcnt vmcnt({n}){extra}')
        self.q = self.q[len(self.q) - n:] if n else []

def srd(p, d, lo, hi, size):
    p(f's_mov_b32 s{d}, s{lo}')
    p(f's_and_b32 s{d+1}, s{hi}, 0xffff')
    p(f's_mov_b32 s{d+2}, {hex(size)}')
    p(f's_mov_b32 s{d+3}, 0x20000')

def kernel_wrap(name, prog, lds_note=''):
    nv = prog.maxreg('v') + 1
    ns = max(prog.maxreg('s') + 1, 8)
    acc = (nv + 3) // 4 * 4
    txt = f""".text
.globl {name}
.p2align 8
.type {name},@function
{name}:
{prog.text()}.section .rodata,"a"
.p2align 6
.amdhsa_kernel {name}
  .amdhsa_next_free_vgpr {nv}
  .amdhsa_next_free_sgpr {ns}
  .amdhsa_accum_offset {acc}
  .amdhsa_group_segment_fixed_size 0
  .amdhsa_kernarg_size 80
  .amdhsa_user_sgpr_count 2
  .amdhsa_user_sgpr_kernarg_segment_ptr 1
  .amdhsa_system_sgpr_workgroup_id_x 1
.end_amdhsa_kernel
"""
    return txt

def interleave(main, fill):
    out = []
    n = len(main); k = 0
    for i, m in enumerate(main):
        out.append(m)
        tgt = (len(fill) * (i + 1)) // n
        out.extend(fill[k:tgt]); k = tgt
    return out
```

```python
from common import *

XF = 128
ACCA = 80
ACCB = 48
WF = 24
CS = 12
vXA = 1
vTR = [2, 3, 4]
vXD = [5, 6]
vWD = [7, 8, 9]
vSUM, vSQ = 10, 11
vSEL = 48
vT = [52, 53, 54, 55, 56, 57, 58, 59]
vSUM2, vSQ2 = 60, 61
vBD = [62, 63]
vTRB = [64, 65]
vLANE = 66
XSLOT = lambda s: s * 16384
WSLOT = lambda s: 65536 + s * 24576
SCR = 65536 + 16384
SCR_ST = SCR
SCR_CSA = SCR + 2048
SCR_CSB = SCR + 2048 + 3072
SCR_R = SCR + 2048 + 3072 + 2048
sX, sC0, sC1, sC2, sG, sU, sW = 8, 12, 16, 20, 24, 28, 32
def S(n): return f's[{n}:{n+3}]'
def V(n, k): return f'v[{n}:{n+k-1}]'
GRAY = [0, 1, 3, 2]

def dma_A(p, vm, c):
    slot = c % 4
    L = []
    for e in range(2):
        L.append([f's_add_u32 m0, s55, {XSLOT(slot) + e*1024}', f's_add_u32 s49, s48, {c*128}',
                  f'buffer_load_dwordx4 v{vXD[e]}, {S(sX)}, s49 offen lds'])
    for cg, (sr, so) in enumerate(((sC0, 50), (sC1, 51), (sC2, 52))):
        adv = f's_add_u32 s{so}, s{so}, 196608' if cg == 0 else f's_add_u32 s{so}, s{so}, s53'
        L.append([f's_add_u32 m0, s56, {WSLOT(slot) + cg*8192}', 's_nop 0',
                  f'buffer_load_dwordx4 v{vWD[cg]}, {S(sr)}, s{so} offen lds', adv])
    for g in L:
        p.extend(g); vm.issue(f'A{c}')

def bslot(b):
    return XSLOT(b // 2) if b % 2 == 0 else WSLOT(b // 2)

def dma_B(p, vm, b):
    for cg, sr in enumerate((sG, sU)):
        p(f's_add_u32 m0, s56, {bslot(b) + cg*8192}')
        p('s_nop 0')
        p(f'buffer_load_dwordx4 v{vBD[cg]}, {S(sr)}, s54 offen lds')
        vm.issue(f'B{b}')
    p('s_add_u32 s54, s54, 229376')

def prologue(p, vm):
    p('s_cmp_ge_u32 s2, 256')
    p('s_cbranch_scc1 K1_END')
    p('s_load_dwordx4 s[4:7], s[0:1], 0')
    p('s_load_dwordx4 s[36:39], s[0:1], 32')
    p('s_load_dwordx2 s[40:41], s[0:1], 72')
    p('v_lshrrev_b32 v1, 6, v0')
    p(f'v_and_b32 v{vLANE}, 63, v0')
    p('v_readfirstlane_b32 s42, v1')
    p('s_and_b32 s45, s2, 1'); p('s_lshl_b32 s45, s45, 3'); p('s_lshr_b32 s3, s2, 3'); p('s_and_b32 s46, s3, 7'); p('s_add_u32 s45, s45, s46')
    p('s_lshr_b32 s3, s3, 3'); p('s_and_b32 s46, s2, 6'); p('s_lshl_b32 s46, s46, 1'); p('s_add_u32 s46, s46, s3')
    p('s_and_b32 s43, s42, 3'); p('s_lshr_b32 s44, s42, 2')
    p('s_lshl_b32 s55, s42, 11'); p('s_lshl_b32 s56, s42, 10')
    p('s_lshl_b32 s48, s45, 17')
    p('s_lshl_b32 s57, s46, 7')
    p('s_add_u32 s50, s57, 2048')
    p('s_sub_u32 s58, s57, 1024')
    p('s_cmp_ge_u32 s46, 8'); p('s_cselect_b32 s50, s58, s50')
    p('s_mul_i32 s58, s57, 3'); p('s_sub_u32 s58, s58, 4096')
    p('s_lshl_b32 s51, s46, 8')
    p('s_mov_b32 s52, s51')
    p('s_add_u32 s54, s51, 128')
    p('s_add_u32 s59, s58, 128'); p('s_add_u32 s60, s58, 256'); p('s_add_u32 s61, s57, 1536')
    p('s_cmp_ge_u32 s46, 12')
    p('s_cselect_b32 s50, s58, s50'); p('s_cselect_b32 s51, s59, s51'); p('s_cselect_b32 s52, s60, s52'); p('s_cselect_b32 s54, s61, s54')
    p('s_mov_b32 s53, 229376'); p('s_cselect_b32 s53, 196608, s53')
    p('s_movk_i32 s62, 3584'); p('s_cselect_b32 s62, 3072, s62')
    p('s_mov_b32 s63, s50'); p('s_mov_b32 s64, s51'); p('s_mov_b32 s65, s52'); p('s_mov_b32 s66, s54')
    L = vLANE
    p(f'v_lshrrev_b32 v2, 3, v{L}'); p(f'v_lshrrev_b32 v3, 4, v{L}'); p(f'v_and_b32 v4, 7, v{L}')
    p('s_lshl_b32 s3, s42, 4')
    p('v_add_u32 v12, s3, v2'); p('v_lshlrev_b32 v12, 10, v12')
    p('v_xor_b32 v13, v4, v3'); p(f'v_lshl_add_u32 v{vXD[0]}, v13, 4, v12')
    p(f'v_xor_b32 v{vXD[1]}, 64, v{vXD[0]}'); p(f'v_add_u32 v{vXD[1]}, 8192, v{vXD[1]}')
    p('s_lshl_b32 s3, s42, 3')
    p('v_add_u32 v12, s3, v2')
    p('v_and_b32 v13, 1, v3'); p('v_lshlrev_b32 v13, 2, v13'); p('v_xor_b32 v13, v13, v4'); p('v_lshlrev_b32 v13, 4, v13')
    p('v_xor_b32 v14, 32, v13')
    p('v_mul_u32_u24 v15, 3072, v12'); p(f'v_add_u32 v{vWD[0]}, v15, v13')
    p('v_mul_u32_u24 v15, s62, v12'); p(f'v_add_u32 v{vWD[1]}, v15, v13'); p(f'v_add_u32 v{vWD[2]}, v15, v14')
    p('v_mul_u32_u24 v15, 3584, v12'); p(f'v_add_u32 v{vBD[0]}, v15, v13'); p(f'v_add_u32 v{vBD[1]}, v15, v14')
    p('s_waitcnt lgkmcnt(0)')
    srd(p, sX, 4, 5, SIZES['x']); srd(p, sC0, 6, 7, SIZES['wqkv'])
    srd(p, sG, 36, 37, SIZES['gate']); srd(p, sU, 38, 39, SIZES['up'])
    p('s_cmp_ge_u32 s46, 12')
    for d, a in ((sC1, sG), (sC2, sU)):
        for k in range(3): p(f's_cselect_b32 s{d+k}, s{sC0+k}, s{a+k}')
        p(f's_mov_b32 s{d+3}, 0x20000')
    for c in range(4): dma_A(p, vm, c)
    srd(p, sW, 40, 41, SIZES['ws'])
    p('s_lshl_b32 s3, s44, 1'); p('s_xor_b32 s67, s43, s3')
    p(f'v_and_b32 v12, 31, v{L}'); p(f'v_lshrrev_b32 v13, 5, v{L}')
    p('s_lshl_b32 s3, s67, 1'); p('v_add_u32 v14, s3, v13')
    p('v_bfe_u32 v15, v12, 1, 3'); p('v_xor_b32 v14, v14, v15')
    p('s_lshl_b32 s3, s43, 5'); p('v_add_u32 v15, s3, v12'); p('v_lshlrev_b32 v15, 7, v15')
    p(f'v_lshl_add_u32 v{vXA}, v14, 4, v15')
    p(f'v_bfe_u32 v14, v{L}, 2, 2'); p('v_lshl_add_u32 v14, v13, 3, v14'); p('v_lshlrev_b32 v14, 7, v14')
    p(f'v_and_b32 v15, 3, v{L}'); p('v_lshl_add_u32 v14, v15, 3, v14')
    p('s_lshl_b32 s3, s67, 11'); p('v_add_u32 v14, s3, v14')
    p(f'v_bfe_u32 v15, v{L}, 3, 1'); p('v_lshlrev_b32 v15, 1, v15')
    p(f'v_bfe_u32 v16, v{L}, 4, 1')
    p('s_lshl_b32 s3, s44, 1'); p('v_add_u32 v17, s3, v16'); p('v_xor_b32 v17, v17, v15')
    p(f'v_lshl_add_u32 v{vTR[0]}, v17, 5, v14'); p(f'v_add_u32 v{vTR[0]}, {WSLOT(0)}, v{vTR[0]}')
    p('v_xor_b32 v18, v15, v16'); p('v_xor_b32 v18, s3, v18')
    p('v_lshlrev_b32 v19, 13, v16'); p('v_add_u32 v19, v19, v14')
    p(f'v_lshl_add_u32 v{vTRB[0]}, v18, 5, v19'); p(f'v_xor_b32 v{vTRB[1]}, 32, v{vTRB[0]}')
    p(f'v_and_b32 v18, 1, v{L}'); p('v_cmp_eq_u32 vcc, v18, v16'); p('v_mov_b32 v19, 0x3f803f80')
    p(f'v_cndmask_b32 v{vSEL}, 0, v19, vcc')
    for k in range(1, 4): p(f'v_mov_b32 v{vSEL+k}, v{vSEL}')
    for r in (vSUM, vSQ, vSUM2, vSQ2): p(f'v_mov_b32 v{r}, 0')

def tr_setup(p, variant):
    if variant == 'QK3':
        p(f'v_add_u32 v{vTR[1]}, 8192, v{vTR[0]}')
        p(f'v_xor_b32 v{vTR[2]}, 32, v{vTR[0]}'); p(f'v_add_u32 v{vTR[2]}, 16384, v{vTR[2]}')
    else:
        p(f'v_add_u32 v{vTR[1]}, {WSLOT(0) + 8192}, v{vTRB[0]}'); p(f'v_add_u32 v{vTR[2]}, {WSLOT(0) + 8192}, v{vTRB[1]}')

def reads_A(c, pp):
    buf = (c * 4 + pp) % 2
    L = [f'ds_read_b128 {V(XF + 4*(c*4+pp), 4)}, v{vXA} offset:{XSLOT(c % 4)}']
    for t in range(3):
        for j2 in range(2):
            L.append(f'ds_read_b64_tr_b16 {V(WF + buf*12 + t*4 + j2*2, 2)}, v{vTR[t]} offset:{j2*512}')
    return L

def addr_step(regs_x, regs_tr, pp_next, delta):
    bit = 1 if pp_next in (1, 3) else 2
    L = []
    for r in regs_x: L.append(f'v_xor_b32 v{r}, {bit*32}, v{r}')
    for r in regs_tr:
        L.append(f'v_xor_b32 v{r}, {bit*2048}, v{r}')
        if delta: L.append(f'v_add_u32 v{r}, {delta & 0xffffffff}, v{r}')
    return L

def stats(xr):
    L = []
    for k in range(4):
        a, b = vT[2*(k % 2)], vT[2*(k % 2) + 1]
        L += [f'v_lshlrev_b32 v{a}, 16, v{xr+k}', f'v_and_b32 v{b}, 0xffff0000, v{xr+k}',
              f'v_add_f32 v{vSUM}, v{vSUM}, v{a}', f'v_fmac_f32 v{vSQ}, v{a}, v{a}',
              f'v_add_f32 v{vSUM2}, v{vSUM2}, v{b}', f'v_fmac_f32 v{vSQ2}, v{b}, v{b}']
    return L

def cs_write(p, ntile, base, gmul):
    L = vLANE
    a = vT[4]
    p(f'v_and_b32 v{a}, 1, v{L}'); p(f'v_lshlrev_b32 v{a}, 8, v{a}')
    p(f'v_lshrrev_b32 v{vT[5]}, 4, v{L}'); p(f'v_lshl_add_u32 v{a}, v{vT[5]}, 6, v{a}')
    p(f's_mul_i32 s3, s44, {gmul*512}'); p('s_lshl_b32 s68, s43, 2'); p('s_add_u32 s3, s3, s68'); p(f's_add_u32 s3, s3, {base}')
    p(f'v_add_u32 v{a}, s3, v{a}')
    p('s_mov_b32 s70, 0x00030003'); p('s_mov_b32 s71, 0x00030003')
    for t in range(ntile):
        for k in range(4):
            r = CS + t*4 + k
            p(f'v_cvt_pk_bf16_f32 v{vT[0]}, v{r}, v{r}')
            p(f'v_and_b32 v{vT[0]}, 0xffff0000, v{vT[0]}')
            p(f'v_sub_f32 v{vT[1]}, v{r}, v{vT[0]}')
            p(f'v_cvt_pk_bf16_f32 v{r}, v{vT[0]}, v{vT[1]}')
    p('s_mov_b64 exec, s[70:71]')
    for t in range(ntile):
        for k in range(4):
            p(f'ds_write_b32 v{a}, v{CS + t*4 + k} offset:{t*512 + k*16}')
    p('s_mov_b64 exec, -1')

def phaseA(p, vm, variant):
    swap0 = variant == 'V'
    tr_setup(p, variant)
    vm.wait(p, 'A0'); p('s_barrier')
    p.extend(reads_A(0, 0))
    for c in range(8):
        for pp in range(4):
            buf = (c * 4 + pp) % 2
            xr = XF + 4 * (c * 4 + pp)
            first = (c == 0 and pp == 0)
            mf = []
            for t in range(3):
                w = V(WF + buf*12 + t*4, 4); x = V(xr, 4); acc = V(ACCA + 16*t, 16)
                a, b = (x, w) if (swap0 and t == 0) else (w, x)
                mf.append(f'v_mfma_f32_32x32x16_bf16 {acc}, {a}, {b}, {"0" if first else acc}')
            csm = []
            if pp == 0:
                for t in range(3):
                    d = V(CS + 4*t, 4)
                    csm.append(f'v_mfma_f32_16x16x32_bf16 {d}, {V(WF + buf*12 + t*4, 4)}, {V(vSEL, 4)}, {"0" if c == 0 else d}')
            last = (c == 7 and pp == 3)
            if pp < 3:
                adv = addr_step([vXA], vTR, pp + 1, 0)
                nxt = reads_A(c, pp + 1)
                p.extend(adv)
                p('s_waitcnt lgkmcnt(0)')
                fill = nxt + (stats(xr) if pp < 2 else [])
                p.extend(interleave(mf + csm, fill))
                if c == 7 and pp == 2:
                    p(f'v_add_f32 v{vSUM}, v{vSUM}, v{vSUM2}'); p(f'v_add_f32 v{vSQ}, v{vSQ}, v{vSQ2}')
                    p(f'v_mov_b32 v{vSUM2}, v{vSUM}'); p(f'v_mov_b32 v{vSQ2}, v{vSQ}')
                    p(f'v_permlane32_swap_b32 v{vSUM2}, v{vSUM}'); p(f'v_permlane32_swap_b32 v{vSQ2}, v{vSQ}')
                    p(f'v_add_f32 v{vSUM}, v{vSUM}, v{vSUM2}'); p(f'v_add_f32 v{vSQ}, v{vSQ}, v{vSQ2}')
                    p(f'v_and_b32 v{vT[6]}, 31, v{vLANE}'); p(f'v_lshlrev_b32 v{vT[6]}, 3, v{vT[6]}')
                    p('s_lshl_b32 s3, s42, 8'); p(f's_add_u32 s3, s3, {SCR_ST}'); p(f'v_add_u32 v{vT[7]}, s3, v{vT[6]}')
                    p(f'ds_write_b64 v{vT[7]}, {V(vSUM, 2)}')
                    cs_write(p, 3, SCR_CSA, 3)
            else:
                if not last:
                    delta = 24576 if (c + 1) % 4 else -73728
                    p.extend(addr_step([vXA], vTR, 0, delta))
                    vm.wait(p, f'A{c+1}', ' lgkmcnt(0)')
                else:
                    vm.wait(p, ['B0', 'B1'], ' lgkmcnt(0)')
                p('s_barrier')
                p(mf[0])
                if c + 4 < 8: dma_A(p, vm, c + 4)
                else:
                    dma_B(p, vm, 2*(c-4)); dma_B(p, vm, 2*(c-4) + 1)
                nxt = reads_A(c + 1, 0) if not last else []
                p.extend(interleave(mf[1:], nxt))

vR, vC1, vC2, vS2, vMF = 5, 6, 7, 8, 24
def stats_final(p):
    t = vT
    p('s_xor_b32 s3, s42, 4'); p('s_lshl_b32 s3, s3, 8'); p(f's_add_u32 s3, s3, {SCR_ST}'); p(f'v_add_u32 v{t[7]}, s3, v{t[6]}')
    p(f'ds_read_b64 {V(vSUM2, 2)}, v{t[7]}')
    p('s_waitcnt lgkmcnt(0)')
    p(f'v_add_f32 v{vSUM}, v{vSUM}, v{vSUM2}'); p(f'v_add_f32 v{vSQ}, v{vSQ}, v{vSQ2}')
    p(f'v_mul_f32 v{vSUM}, {hexf(1/512)}, v{vSUM}')
    p(f'v_mul_f32 v{vSQ}, {hexf(1/512)}, v{vSQ}')
    p(f'v_fma_f32 v{vSQ}, -v{vSUM}, v{vSUM}, v{vSQ}')
    p(f'v_max_f32 v{vSQ}, 0, v{vSQ}')
    p(f'v_cvt_pk_bf16_f32 v{t[0]}, v{vSQ}, v{vSQ}'); p(f'v_and_b32 v{t[0]}, 0xffff0000, v{t[0]}')
    p(f'v_add_f32 v{t[0]}, {hexf(1e-5)}, v{t[0]}')
    p(f'v_cvt_pk_bf16_f32 v{t[0]}, v{t[0]}, v{t[0]}'); p(f'v_and_b32 v{t[0]}, 0xffff0000, v{t[0]}')
    p(f'v_sqrt_f32 v{t[0]}, v{t[0]}')
    p(f'v_cvt_pk_bf16_f32 v{t[0]}, v{t[0]}, v{t[0]}'); p(f'v_and_b32 v{t[0]}, 0xffff0000, v{t[0]}')
    p(f'v_rcp_f32 v{vR}, v{t[0]}')
    p(f'v_mul_f32 v{vS2}, v{t[0]}, v{t[0]}')
    c1 = -2 * 0.7978845608028654 * LOG2E
    p(f'v_mul_f32 v{vC1}, {hexf(c1)}, v{vR}')
    p(f'v_mul_f32 v{vC2}, v{vR}, v{vR}'); p(f'v_mul_f32 v{vC2}, v{vC2}, v{vC1}'); p(f'v_mul_f32 v{vC2}, {hexf(0.044715)}, v{vC2}')
    p(f'v_cvt_pk_bf16_f32 v{t[0]}, -v{vSUM}, -v{vSUM}')
    p(f'v_cmp_gt_u32 vcc, 32, v{vLANE}')
    p(f'v_cndmask_b32 v{vMF}, 0, v{t[0]}, vcc')
    for k in range(1, 4): p(f'v_mov_b32 v{vMF+k}, v{vMF}')

def corr(p, accs, base, gmul, swap0, tmp):
    a = vT[4]
    p(f'v_and_b32 v{a}, 31, v{vLANE}'); p(f'v_lshlrev_b32 v{a}, 4, v{a}')
    p(f's_mul_i32 s3, s44, {gmul*512}'); p(f's_add_u32 s3, s3, {base}'); p(f'v_add_u32 v{a}, s3, v{a}')
    for t in range(len(accs)): p(f'ds_read_b128 {V(tmp + 4*t, 4)}, v{a} offset:{t*512}')
    p('s_waitcnt lgkmcnt(0)')
    for t, acc in enumerate(accs):
        x, y = V(tmp + 4*t, 4), V(vMF, 4)
        if swap0 and t == 0: x, y = y, x
        p(f'v_mfma_f32_32x32x16_bf16 {V(acc, 16)}, {x}, {y}, {V(acc, 16)}')

def epi_qk(p, vm, acc, scol, vL16):
    p(f's_lshr_b32 s72, s{scol}, 7')
    p('s_and_b32 s73, s72, 7'); p('s_lshl_b32 s73, s73, 2'); p('s_lshl_b32 s3, s44, 1'); p('s_add_u32 s73, s73, s3')
    p('s_lshl_b32 s73, s73, 6'); p('s_add_u32 s73, s73, s69')
    p('s_lshl_b32 s74, s73, 10'); p('s_lshl_b32 s75, s73, 11'); p(f's_add_u32 s75, s75, {KVOFF}')
    p('s_cmp_ge_u32 s72, 8')
    p('s_cselect_b32 s74, s75, s74'); p('s_mov_b32 s75, 65536'); p('s_cselect_b32 s75, 131072, s75'); p(f's_cselect_b32 s76, 1.0, {hexf(QSCALE)}')
    p('s_add_u32 s75, s75, s74')
    p(f'v_mul_f32 v{vT[0]}, s76, v{vR}')
    for k in range(16): p(f'v_mul_f32 v{acc+k}, v{vT[0]}, v{acc+k}')
    for k in range(8): p(f'v_cvt_pk_bf16_f32 v{acc+k}, v{acc+2*k}, v{acc+2*k+1}')
    p(f'buffer_store_dwordx4 {V(acc, 4)}, v{vL16}, {S(sW)}, s74 offen'); vm.issue('st')
    p(f'buffer_store_dwordx4 {V(acc+4, 4)}, v{vL16}, {S(sW)}, s75 offen'); vm.issue('st')

def epi_v(p, vm, acc, scol, tmp):
    a = vT[4]
    p(f'v_and_b32 v{a}, 31, v{vLANE}'); p(f'v_lshlrev_b32 v{a}, 2, v{a}')
    p('s_lshl_b32 s3, s42, 7'); p(f's_add_u32 s3, s3, {SCR_R}'); p(f'v_add_u32 v{a}, s3, v{a}')
    p(f'ds_write_b32 v{a}, v{vR}')
    p(f'v_lshrrev_b32 v{a}, 5, v{vLANE}'); p(f'v_lshlrev_b32 v{a}, 4, v{a}'); p(f'v_add_u32 v{a}, s3, v{a}')
    p('s_waitcnt lgkmcnt(0)')
    for g in range(4): p(f'ds_read_b128 {V(tmp + 4*g, 4)}, v{a} offset:{g*32}')
    p(f's_lshr_b32 s72, s{scol}, 7'); p('s_and_b32 s73, s72, 7'); p('s_lshl_b32 s73, s73, 2'); p('s_lshl_b32 s3, s44, 1'); p('s_add_u32 s73, s73, s3')
    p('s_lshl_b32 s73, s73, 6'); p('s_add_u32 s73, s73, s69'); p('s_lshl_b32 s74, s73, 11'); p(f's_add_u32 s74, s74, {KVOFF + 1024}')
    p(f'v_bfe_u32 v{vT[0]}, v{vLANE}, 4, 1'); p(f'v_lshlrev_b32 v{vT[0]}, 17, v{vT[0]}')
    p(f'v_lshrrev_b32 v{vT[1]}, 5, v{vLANE}'); p(f'v_lshl_add_u32 v{vT[0]}, v{vT[1]}, 8, v{vT[0]}')
    p(f'v_and_b32 v{vT[1]}, 15, v{vLANE}'); p(f'v_lshl_add_u32 v{vT[0]}, v{vT[1]}, 4, v{vT[0]}')
    p('s_waitcnt lgkmcnt(0)')
    for k in range(16): p(f'v_mul_f32 v{acc+k}, v{tmp+k}, v{acc+k}')
    for k in range(8): p(f'v_cvt_pk_bf16_f32 v{acc+k}, v{acc+2*k}, v{acc+2*k+1}')
    p(f'buffer_store_dwordx4 {V(acc, 4)}, v{vT[0]}, {S(sW)}, s74 offen'); vm.issue('st')
    p(f'buffer_store_dwordx4 {V(acc+4, 4)}, v{vT[0]}, {S(sW)}, s74 offen offset:512'); vm.issue('st')

def gelu_ops(acc, tmp):
    L = []
    for k in range(8): L.append(f'v_mul_f32 v{tmp+k}, v{acc+k}, v{acc+k}')
    for k in range(8): L.append(f'v_fma_f32 v{tmp+k}, v{tmp+k}, v{vC2}, v{vC1}')
    for k in range(8): L.append(f'v_mul_f32 v{tmp+k}, v{tmp+k}, v{acc+k}')
    for k in range(8): L.append(f'v_exp_f32 v{tmp+k}, v{tmp+k}')
    for k in range(8): L.append(f'v_mul_f32 v{acc+k}, v{acc+k}, v{acc+8+k}')
    for k in range(8): L.append(f'v_fma_f32 v{tmp+k}, v{tmp+k}, v{vS2}, v{vS2}')
    for k in range(8): L.append(f'v_rcp_f32 v{tmp+k}, v{tmp+k}')
    for k in range(8): L.append(f'v_mul_f32 v{acc+k}, v{acc+k}, v{tmp+k}')
    for k in range(4): L.append(f'v_cvt_pk_bf16_f32 v{acc+k}, v{acc+2*k}, v{acc+2*k+1}')
    return L

def epi_h(p, vm, acc, scol, t, tmp, vL16):
    p(f's_lshr_b32 s72, s{scol}, 5'); p('s_lshl_b32 s3, s44, 1'); p('s_add_u32 s72, s72, s3')
    p('s_mul_i32 s73, s69, 144'); p('s_add_u32 s72, s72, s73'); p('s_lshl_b32 s72, s72, 10'); p(f's_add_u32 s72, s72, {ACT + (32 + t)*1024}')
    p.extend(gelu_ops(acc, tmp))
    p(f'buffer_store_dwordx4 {V(acc, 4)}, v{vL16}, {S(sW)}, s72 offen'); vm.issue('st')

def reads_B(b, pp):
    buf = (b * 4 + pp) % 2
    L = []
    for t in range(2):
        for j2 in range(2):
            L.append(f'ds_read_b64_tr_b16 {V(32 + buf*8 + t*4 + j2*2, 2)}, v{vTR[t]} offset:{j2*512}')
    return L

def phaseB(p, vm, accB, sel):
    p.extend(reads_B(0, 0))
    for b in range(8):
        for pp in range(4):
            buf = (b * 4 + pp) % 2
            xr = XF + 4 * (b * 4 + pp)
            first = (b == 0 and pp == 0)
            mf = [f'v_mfma_f32_32x32x16_bf16 {V(accB + 16*t, 16)}, {V(32 + buf*8 + t*4, 4)}, {V(xr, 4)}, {"0" if first else V(accB + 16*t, 16)}' for t in range(2)]
            if pp == 0:
                mf += [f'v_mfma_f32_16x16x32_bf16 {V(CS + 4*t, 4)}, {V(32 + buf*8 + t*4, 4)}, {V(sel, 4)}, {"0" if b == 0 else V(CS + 4*t, 4)}' for t in range(2)]
            last = (b == 7 and pp == 3)
            if last:
                p('s_waitcnt lgkmcnt(0)'); p.extend(mf); continue
            nb, npp = (b, pp + 1) if pp < 3 else (b + 1, 0)
            p.extend(addr_step([], vTR[:2], npp, (bslot(nb) - bslot(b)) if pp == 3 else 0))
            if pp == 3 and nb % 2 == 0:
                vm.wait(p, [f'B{nb}', f'B{nb+1}'], ' lgkmcnt(0)'); p('s_barrier')
            else:
                p('s_waitcnt lgkmcnt(0)')
            p.extend(interleave(mf, reads_B(nb, npp)))

def body(p, vm, variant):
    phaseA(p, vm, variant)
    p('s_lshl_b32 s69, s45, 2'); p('s_add_u32 s69, s69, s43')
    vL16 = 9
    p(f'v_lshlrev_b32 v{vL16}, 4, v{vLANE}')
    stats_final(p)
    accs = [ACCA, ACCA + 16, ACCA + 32]
    corr(p, accs, SCR_CSA, 3, variant == 'V', 32)
    if variant == 'V': epi_v(p, vm, ACCA, 63, 32)
    else: epi_qk(p, vm, ACCA, 63, vL16)
    if variant == 'QK3':
        epi_qk(p, vm, ACCA + 16, 64, vL16); epi_qk(p, vm, ACCA + 32, 65, vL16)
    else:
        epi_h(p, vm, ACCA + 16, 64, 0, 32, vL16); epi_h(p, vm, ACCA + 32, 64, 1, 32, vL16)
    p(f'v_mov_b32 v{vTR[0]}, v{vTRB[0]}'); p(f'v_mov_b32 v{vTR[1]}, v{vTRB[1]}')
    accB = ACCA + 16
    p('s_nop 4')
    phaseB(p, vm, accB, vSEL)
    cs_write(p, 2, SCR_CSB, 2)
    p('s_waitcnt lgkmcnt(0)'); p('s_barrier')
    corr(p, [accB, accB + 16], SCR_CSB, 2, False, 32)
    epi_h(p, vm, accB, 66, 0, 32, vL16); epi_h(p, vm, accB + 16, 66, 1, 40, vL16)
    p('s_endpgm')

def gen():
    import copy
    p = Prog(); vm = VM()
    prologue(p, vm)
    p('s_cmp_ge_u32 s46, 12'); p('s_cbranch_scc1 K1_QK3')
    p('s_cmp_ge_u32 s46, 8'); p('s_cbranch_scc1 K1_QK1')
    pro = list(p.ins)
    full = Prog(); full.ins = list(pro)
    for variant, label in (('V', None), ('QK1', 'K1_QK1'), ('QK3', 'K1_QK3')):
        q = Prog(); q.ins = list(pro); v2 = copy.deepcopy(vm)
        n0 = len(q.ins)
        body(q, v2, variant)
        pq = Prog(); pq.ins = list(pro); pq.finalize(check_wait=False); npro = len(pq.ins)
        q.finalize()
        if variant == 'V': full.ins = list(q.ins)
        else:
            full(f'{label}:'); full.ins += q.ins[npro:]
    full('K1_END:'); full('s_endpgm')
    return full
```

```python
from common import *
def S(n): return f's[{n}:{n+3}]'
def V(n, k): return f'v[{n}:{n+k-1}]'
sW = 8
vL16 = 1; vKA = [2, 3]; vVA = [4, 5]; vTMP = 6
QF = 8
KF = 12
VF = 20
PF = 36
SB = 48
CM = 80
OA = 96
NT = 64

def kread(t):
    return f'ds_read_b128 {V(KF + 4*(t % 2), 4)}, v{vKA[t // 32]} offset:{(t % 32)*2048}'
def vreads(t):
    return ['s_mov_b64 exec, s[20:21]',
            f'ds_read_b128 {V(VF + 8*(t % 2), 4)}, v{vVA[t // 32]} offset:{(t % 32)*2048 + 1024}',
            f'ds_read_b128 {V(VF + 8*(t % 2) + 4, 4)}, v{vVA[t // 32]} offset:{(t % 32)*2048 + 1536}',
            's_mov_b64 exec, -1']
def smfma(t, c=None):
    return f'v_mfma_f32_32x32x16_bf16 {V(SB + 16*(t % 2), 16)}, {V(KF + 4*(t % 2), 4)}, {V(QF, 4)}, {c or V(CM, 16)}'
def pv(t, h):
    c = '0' if (t == 0 and h == 0) else V(OA, 16)
    return f'v_mfma_f32_32x32x16_bf16 {V(OA, 16)}, {V(VF + 8*(t % 2) + 4*h, 4)}, {V(PF + 4*h, 4)}, {c}'

def rowmax_to_cm(p, src_regs, acc_init=None):
    pass

def gen():
    p = Prog(); vm = VM()
    p('s_cmp_ge_u32 s2, 256'); p('s_cbranch_scc1 K2_END')
    p('s_load_dwordx2 s[4:5], s[0:1], 72')
    p('v_lshrrev_b32 v2, 6, v0'); p('v_and_b32 v0, 63, v0')
    p('v_readfirstlane_b32 s12, v2')
    p('s_and_b32 s13, s2, 7'); p('s_lshl_b32 s13, s13, 2'); p('s_bfe_u32 s3, s2, 0x20003'); p('s_add_u32 s13, s13, s3')
    p('s_lshr_b32 s14, s2, 5'); p('s_lshl_b32 s14, s14, 3'); p('s_add_u32 s14, s14, s12')
    p(f'v_lshlrev_b32 v{vL16}, 4, v0')
    p('s_lshl_b32 s15, s13, 6'); p('s_add_u32 s15, s15, s14'); p('s_lshl_b32 s15, s15, 10')
    p('s_lshl_b32 s16, s13, 17'); p(f's_add_u32 s16, s16, {KVOFF}'); p('s_lshl_b32 s17, s12, 10'); p('s_add_u32 s16, s16, s17')
    p('s_waitcnt lgkmcnt(0)')
    srd(p, sW, 4, 5, SIZES['ws'])
    p(f'buffer_load_dwordx4 {V(QF, 4)}, v{vL16}, {S(sW)}, s15 offen'); vm.issue('Q')
    for i in range(16):
        p(f's_add_u32 m0, s17, {i*8192}'); p(f's_add_u32 s18, s16, {i*8192}')
        p(f'buffer_load_dwordx4 v{vL16}, {S(sW)}, s18 offen lds'); vm.issue('KV0' if i < 2 else 'KV1')
    p(f'v_mov_b32 v{vKA[0]}, v{vL16}'); p(f'v_add_u32 v{vKA[1]}, 65536, v{vL16}')
    p('v_lshrrev_b32 v6, 5, v0'); p('v_and_b32 v7, 15, v0'); p('v_lshlrev_b32 v7, 4, v7')
    p(f'v_lshl_add_u32 v{vVA[0]}, v6, 8, v7'); p(f'v_add_u32 v{vVA[1]}, 65536, v{vVA[0]}')
    p('s_mov_b32 s20, 0x0000ffff'); p('s_mov_b32 s21, 0x0000ffff')
    p('v_and_b32 v6, 27, v0'); p('v_cmp_eq_u32 vcc, 16, v6'); p('v_mov_b32 v7, 0x3f803f80')
    p(f'v_cndmask_b32 v{VF}, 0, v7, vcc')
    for k in range(1, 16): p(f'v_mov_b32 v{VF+k}, v{VF}')
    p('s_mov_b32 s22, 0')
    vm.wait(p, 'KV0'); p('s_barrier')
    p(kread(0)); p('s_waitcnt lgkmcnt(0)')
    p(smfma(0, '0'))
    s = SB
    p(f'v_max3_f32 v{vTMP}, v{s}, v{s+1}, v{s+2}')
    for k in range(3, 15, 2): p(f'v_max3_f32 v{vTMP}, v{vTMP}, v{s+k}, v{s+k+1}')
    p(f'v_max_f32 v{vTMP}, v{vTMP}, v{s+15}')
    p('K2_SETMAX:')
    p(f'v_mov_b32 v{vTMP+1}, v{vTMP}')
    p(f'v_permlane32_swap_b32 v{vTMP}, v{vTMP+1}')
    p(f'v_max_f32 v{vTMP}, v{vTMP}, v{vTMP+1}')
    for k in range(16): p(f'v_sub_f32 v{CM+k}, 0, v{vTMP}')
    p(kread(0)); p(kread(1)); p.extend(vreads(0))
    p('s_waitcnt lgkmcnt(3)')
    p(smfma(0))
    for t in range(NT):
        sb = SB + 16 * (t % 2)
        ex = [f'v_exp_f32 v{sb+k}, v{sb+k}' for k in range(16)]
        cv = [f'v_cvt_pk_bf16_f32 v{PF+k}, v{sb+2*k}, v{sb+2*k+1}' for k in range(8)]
        if t == 6:
            vm.wait(p, 'KV1'); p('s_barrier')
        if t + 1 < NT:
            p('s_waitcnt lgkmcnt(2)')
            p(smfma(t + 1))
        p(ex[0])
        if t > 0: p(pv(t - 1, 1))
        if t + 2 < NT: p(kread(t + 2))
        p.extend(ex[1:8])
        p(ex[8]); p.extend(cv[0:4]); p(ex[9])
        p(f's_waitcnt lgkmcnt({1 if t + 2 < NT else 0})')
        p(ex[10])
        p(pv(t, 0))
        if t + 1 < NT: p.extend(vreads(t + 1))
        p.extend(ex[11:16])
        p(cv[4]); p(cv[5]); p(cv[6]); p(cv[7])
    p(pv(NT - 1, 1))
    p(f'v_mov_b32 v{vTMP+1}, {hexf(2.0**100)}')
    p(f'v_cmp_nlt_f32 vcc, v{OA+8}, v{vTMP+1}')
    p('s_cmp_lg_u64 vcc, 0'); p('s_cselect_b32 s23, 1, 0'); p('s_andn2_b32 s23, s23, s22')
    p(f'v_mov_b32 v{vTMP}, s23'); p('s_lshl_b32 s3, s12, 2'); p('s_add_u32 s3, s3, 131072'); p(f'v_mov_b32 v{vTMP+1}, s3')
    p(f'ds_write_b32 v{vTMP+1}, v{vTMP}')
    p('v_and_b32 v0, 7, v0'); p('v_lshlrev_b32 v0, 2, v0'); p('v_add_u32 v0, 131072, v0')
    p(f'v_rcp_f32 v{OA+9}, v{OA+8}')
    p('s_waitcnt lgkmcnt(0)'); p('s_barrier')
    p(f'ds_read_b32 v{vTMP}, v0')
    for k in range(8): p(f'v_mul_f32 v{OA+k}, v{OA+9}, v{OA+k}')
    for k in range(4): p(f'v_cvt_pk_bf16_f32 v{OA+k}, v{OA+2*k}, v{OA+2*k+1}')
    p('s_mul_i32 s3, s14, 144'); p('s_add_u32 s3, s3, s13'); p('s_lshl_b32 s3, s3, 10'); p(f's_add_u32 s3, s3, {ACT}')
    p('s_waitcnt lgkmcnt(0)')
    p(f'v_cmp_ne_u32 vcc, 0, v{vTMP}')
    p('s_nop 1')
    p('s_cbranch_vccnz K2_SLOW')
    p(f'buffer_store_dwordx4 {V(OA, 4)}, v{vL16}, {S(sW)}, s3 offen')
    p('K2_END:')
    p('s_endpgm')
    p('K2_SLOW:')
    p('s_barrier')
    p('s_mov_b32 s22, 1')
    p(f'v_mov_b32 v{vTMP}, 0xff800000')
    p(f'v_mov_b32 v0, v{vL16}')
    p('s_mov_b32 s24, 0')
    p('K2_SLOWLOOP:')
    p(f'ds_read_b128 {V(KF, 4)}, v0')
    p('v_add_u32 v0, 2048, v0')
    p('s_waitcnt lgkmcnt(0)')
    p(smfma(0, '0'))
    for k in range(0, 16, 2): p(f'v_max3_f32 v{vTMP}, v{vTMP}, v{s+k}, v{s+k+1}')
    p('s_add_u32 s24, s24, 1'); p('s_cmp_lt_u32 s24, 64'); p('s_cbranch_scc1 K2_SLOWLOOP')
    p(f'v_lshrrev_b32 v0, 4, v{vL16}')
    p('s_nop 4')
    p('s_branch K2_SETMAX')
    p.finalize()
    return p
```

```python
from common import *
def S(n): return f's[{n}:{n+3}]'
def V(n, k): return f'v[{n}:{n+k-1}]'
sW, sWO, sWD, sX, sO = 8, 12, 16, 20, 24
vL16 = 1; vWD = 2; vTR = 3; vXO = 4
ACC = 64
AF = 16
BF = 32
NU = 18
DEPTH = 4

def unit_issue(p, vm, u):
    sr = sWO if u < 4 else sWD
    so = 30 if u < 4 else 31
    uu = u if u < 4 else u - 4
    slot = u % DEPTH
    for e in range(2):
        p(f's_add_u32 m0, s36, {slot*2048 + e*1024}'); p(f's_add_u32 s37, s{so}, {uu*16384 + e*8192}')
        p(f'buffer_load_dwordx4 v{vWD}, {S(sr)}, s37 offen lds'); vm.issue(f'U{u}')
    sa = 32 if u < 4 else 33
    for r2 in range(2):
        p(f's_add_u32 s37, s{sa}, {uu*1024 + r2*144*1024}')
        p(f'buffer_load_dwordx4 {V(BF + slot*8 + r2*4, 4)}, v{vL16}, {S(sW)}, s37 offen'); vm.issue(f'U{u}')

def unit_reads(u):
    slot = u % DEPTH
    L = []
    for ct in range(2):
        for j2 in range(2):
            L.append(f'ds_read_b64_tr_b16 {V(AF + (u % 2)*8 + ct*4 + j2*2, 2)}, v{vTR + ct} offset:{slot*2048 + j2*1024}')
    return L

def gen():
    p = Prog(); vm = VM()
    p('s_cmp_ge_u32 s2, 256'); p('s_cbranch_scc1 K3_END')
    p('s_load_dwordx2 s[4:5], s[0:1], 72'); p('s_load_dwordx2 s[6:7], s[0:1], 16')
    p('s_load_dwordx4 s[40:43], s[0:1], 48'); p('s_load_dwordx2 s[44:45], s[0:1], 0')
    p('v_lshrrev_b32 v2, 6, v0'); p('v_and_b32 v0, 63, v0')
    p('v_readfirstlane_b32 s28, v2')
    p('s_and_b32 s34, s2, 7'); p('s_lshl_b32 s34, s34, 2'); p('s_bfe_u32 s3, s2, 0x20003'); p('s_add_u32 s34, s34, s3')
    p('s_lshr_b32 s35, s2, 5')
    p(f'v_lshlrev_b32 v{vL16}, 4, v0')
    p('s_lshl_b32 s3, s35, 7')
    p('s_lshl_b32 s30, s28, 16'); p('s_add_u32 s30, s30, s3')
    p('s_mul_i32 s31, s28, 229376'); p('s_add_u32 s31, s31, s3')
    p('s_mul_i32 s3, s34, 288'); p('s_lshl_b32 s32, s28, 2'); p('s_add_u32 s32, s32, s3'); p('s_lshl_b32 s32, s32, 10'); p(f's_add_u32 s32, s32, {ACT}')
    p('s_mul_i32 s33, s28, 14'); p('s_add_u32 s33, s33, s3'); p('s_lshl_b32 s33, s33, 10'); p(f's_add_u32 s33, s33, {ACT + 32*1024}')
    p(f's_mul_i32 s36, s28, {DEPTH*2048}')
    p('v_lshrrev_b32 v5, 3, v0'); p('v_bfe_u32 v6, v0, 4, 1'); p('v_lshlrev_b32 v6, 2, v6'); p('v_and_b32 v7, 7, v0'); p('v_xor_b32 v6, v6, v7')
    p('v_lshlrev_b32 v6, 4, v6'); p(f'v_lshl_add_u32 v{vWD}, v5, 10, v6')
    p('s_waitcnt lgkmcnt(0)')
    srd(p, sW, 4, 5, SIZES['ws']); srd(p, sWO, 6, 7, SIZES['wo']); srd(p, sWD, 40, 41, SIZES['down'])
    for u in range(DEPTH - 1): unit_issue(p, vm, u)
    srd(p, sX, 44, 45, SIZES['x']); srd(p, sO, 42, 43, SIZES['out'])
    p('v_lshrrev_b32 v5, 5, v0'); p('v_bfe_u32 v6, v0, 2, 2'); p('v_lshl_add_u32 v5, v5, 2, v6'); p('v_lshlrev_b32 v5, 7, v5')
    p('v_and_b32 v6, 3, v0'); p('v_lshl_add_u32 v5, v6, 3, v5')
    p('v_bfe_u32 v6, v0, 3, 1'); p('v_lshlrev_b32 v6, 1, v6'); p('v_bfe_u32 v7, v0, 4, 1'); p('v_xor_b32 v6, v6, v7')
    p('v_lshl_add_u32 v5, v6, 5, v5'); p(f'v_add_u32 v{vTR}, s36, v5'); p(f'v_xor_b32 v{vTR+1}, 64, v{vTR}')
    p('s_lshr_b32 s3, s28, 1'); p('s_and_b32 s38, s3, 1'); p('s_lshl_b32 s38, s38, 5'); p('s_lshl_b32 s39, s34, 6'); p('s_add_u32 s38, s38, s39'); p('s_lshl_b32 s38, s38, 10')
    p('s_lshr_b32 s3, s28, 2'); p('s_lshl_b32 s3, s3, 6'); p('s_add_u32 s38, s38, s3')
    p('s_and_b32 s3, s28, 1'); p('s_lshl_b32 s3, s3, 5'); p('s_add_u32 s38, s38, s3')
    p('s_lshl_b32 s3, s35, 7'); p('s_add_u32 s38, s38, s3')
    p('v_and_b32 v5, 31, v0'); p('v_lshlrev_b32 v5, 10, v5'); p('v_lshrrev_b32 v6, 5, v0'); p('v_lshl_add_u32 v5, v6, 4, v5')
    p(f'buffer_load_dwordx4 v[8:11], v5, {S(sX)}, s38 offen'); vm.issue('X')
    vm.wait(p, 'U0')
    p.extend(unit_reads(0))
    for u in range(NU):
        slot = u % DEPTH
        mf = []
        for ct in range(2):
            for r2 in range(2):
                acc = V(ACC + 16*(ct*2 + r2), 16)
                mf.append(f'v_mfma_f32_32x32x16_bf16 {acc}, {V(AF + (u % 2)*8 + ct*4, 4)}, {V(BF + slot*8 + r2*4, 4)}, {"0" if u == 0 else acc}')
        p('s_waitcnt lgkmcnt(0)')
        if u + DEPTH - 1 < NU: unit_issue(p, vm, u + DEPTH - 1)
        if u + 1 < NU:
            vm.wait(p, f'U{u+1}')
            p.extend(interleave(mf, unit_reads(u + 1)))
        else:
            p.extend(mf)
    p('s_barrier')
    p('s_lshl_b32 s3, s28, 14'); p(f'v_add_u32 v6, s3, v{vL16}')
    for q in range(16): p(f'ds_write_b128 v6, {V(ACC + 4*q, 4)} offset:{q*1024}')
    p('s_lshl_b32 s3, s28, 11'); p(f'v_add_u32 v6, s3, v{vL16}'); p('v_add_u32 v7, 65536, v6')
    p('s_waitcnt lgkmcnt(0)'); p('s_barrier')
    for w in range(8):
        for h in range(2):
            p(f'ds_read_b128 {V(ACC + 8*w + 4*h, 4)}, v{6 + w // 4} offset:{(w % 4)*16384 + h*1024}')
        if w == 3: pass
    for w in range(1, 8):
        p(f's_waitcnt lgkmcnt({min(15, 2*(7-w))})')
        for k in range(8): p(f'v_add_f32 v{ACC+k}, v{ACC+k}, v{ACC + 8*w + k}')
    for k in range(4): p(f'v_permlane32_swap_b32 v{ACC+k}, v{ACC+4+k}')
    vm.wait(p, 'X')
    for k in range(4):
        p(f'v_lshlrev_b32 v12, 16, v{8+k}'); p(f'v_and_b32 v13, 0xffff0000, v{8+k}')
        p(f'v_add_f32 v{ACC+2*k}, v{ACC+2*k}, v12'); p(f'v_add_f32 v{ACC+2*k+1}, v{ACC+2*k+1}, v13')
    for k in range(4): p(f'v_cvt_pk_bf16_f32 v{ACC+k}, v{ACC+2*k}, v{ACC+2*k+1}')
    p(f'buffer_store_dwordx4 {V(ACC, 4)}, v5, {S(sO)}, s38 offen')
    p('K3_END:')
    p('s_endpgm')
    p.finalize()
    return p
```

```python
import sys, importlib
from common import *
import k1, k2, k3
HDR = open('parallel_sum__mha_block__glu_gated_geglu__prompt.s.ref').read().split('; Override launch')[0]
def build(path, extra_empty=0):
    ks = [('k1_kernel', k1.gen(), 163840), ('k2_kernel', k2.gen(), 131072 + 64), ('k3_kernel', k3.gen(), 131072)]
    out = HDR
    for n, p, lds in ks: out += f'; @launch kernel={n} grid=(256,1,1) block=(512,1,1) lds={lds}\n'
    for i in range(extra_empty): out += '; @launch kernel=nop_kernel grid=(256,1,1) block=(512,1,1) lds=0\n'
    out += '.amdgcn_target "amdgcn-amd-amdhsa--gfx950"\n'
    for n, p, lds in ks: out += kernel_wrap(n, p)
    if extra_empty:
        q = Prog(); q('v_mov_b32 v0, 0'); q('s_endpgm'); out += kernel_wrap('nop_kernel', q)
    open(path, 'w').write(out)
    print(path, len(out), 'bytes', [(n, len(p.ins), p.maxreg('v')+1) for n, p, _ in ks])
if __name__ == '__main__':
    build('parallel_sum__mha_block__glu_gated_geglu__prompt.s')
    build('v1_plus2.s', 2)
```
